```python
import torch

def _softmax(x, axis=-1):
    return torch.softmax(x, dim=axis)
def _gelu(x):
    return torch.nn.functional.gelu(x, approximate="tanh")
def _silu(x):
    return torch.nn.functional.silu(x)
def _sigmoid(x):
    return torch.sigmoid(x)
def _layernorm(x, axis=-1, eps=1e-5):
    m = x.mean(dim=axis, keepdim=True)
    v = x.var(dim=axis, keepdim=True, unbiased=False)
    return (x - m) / torch.sqrt(v + eps)
def _scatter_add(tgt, idx, src, axis=0):
    return tgt.clone().index_add_(axis, idx, src)
def _segment_sum(src, seg, n):
    out = torch.zeros((n,) + src.shape[1:], dtype=src.dtype)
    return out.index_add_(0, seg, src)
def _pad(x, pw):
    flat = tuple(v for pair in reversed(pw) for v in pair)
    return torch.nn.functional.pad(x, flat)

kernel_name = 'standalone__gqa_softmax__decode'

def setup_inputs():

    _w = (lambda a: (lambda t: t.to(torch.bfloat16) if t.is_floating_point() else t)(torch.as_tensor(a)))
    B, Hq, Hkv, Sq, Sk, D = 4, 16, 8, 1, 16384, 256
    return {
        "q": _w((lambda *s: torch.randn(*s, dtype=torch.bfloat16) * 0.8)(B, Hq, Sq, D)),
        "k": _w((lambda *s: torch.randn(*s, dtype=torch.bfloat16) * 0.8)(B, Hkv, Sk, D)),
        "v": _w((lambda *s: torch.randn(*s, dtype=torch.bfloat16) * 0.05)(B, Hkv, Sk, D)),
    }

def reference(q, k, v):
    B, Hq, Sq, D = q.shape
    Hkv = k.shape[1]
    rep = Hq // Hkv
    k = (lambda x, n, axis: torch.repeat_interleave(x, n, dim=axis))(k, rep, axis=1)
    v = (lambda x, n, axis: torch.repeat_interleave(x, n, dim=axis))(v, rep, axis=1)
    scale = D ** -0.5
    scores = torch.einsum("bhqd,bhkd->bhqk", q, k) * scale
    p = _softmax(scores, axis=-1)
    return torch.einsum("bhqk,bhkd->bhqd", p, v)
```

```python
import sys
from build import build
KN="standalone__gqa_softmax__decode_kernel"
def gen(name, waves=4, ring=8, T_kb=4, Z_kb=64, S=12, layout="B", flags="nt", pat="lin", lds=1024, cstride=8, rot=0, mode="vatom", allbar=False, stamps=True):
    nwg=256
    T=T_kb*1024; Z=Z_kb*1024
    NU=(8<<20)//Z; NS=NU//8
    npiece=Z//(T*waves)
    lZ=Z.bit_length()-1
    tw = waves+1 if mode=="sched" else waves
    o=[]; A=o.append
    A(f"; @launch grid=({nwg},1,1) block=({tw*64},1,1) lds={lds}")
    A('.amdgcn_target "amdgcn-amd-amdhsa--gfx950"\n.text\n.globl %s\n.p2align 8\n.type %s,@function\n%s:'%(KN,KN,KN))
    A(f"s_cmp_ge_u32 s2, {nwg}\ns_cbranch_scc1 L_end")
    A("s_memrealtime s[92:93]\ns_load_dwordx4 s[4:7], s[0:1], 8\ns_load_dwordx4 s[76:79], s[0:1], 24\ns_load_dwordx2 s[88:89], s[0:1], 40")
    A("v_lshrrev_b32 v1, 6, v0\nv_and_b32 v2, 63, v0\ns_nop 0\nv_readfirstlane_b32 s3, v1")
    A(f"s_mul_i32 s23, s3, {T}")
    A("v_lshlrev_b32 v3, 4, v2\nv_add_u32 v3, s23, v3")
    A("v_and_b32 v4, 15, v2\nv_lshrrev_b32 v5, 4, v2")
    A("v_lshlrev_b32 v6, 9, v4\nv_lshl_add_u32 v6, v5, 4, v6\nv_add_u32 v6, s23, v6")
    A("v_lshlrev_b32 v7, 11, v5\nv_lshl_add_u32 v7, v4, 4, v7\nv_add_u32 v7, s23, v7")
    A("s_lshr_b32 s80, s2, 3\ns_and_b32 s81, s2, 7")
    A(f"s_mul_i32 s82, s80, {cstride}\nv_mov_b32 v12, s82\nv_mov_b32 v13, 0")
    A(f"s_mul_i32 s84, s80, {rot}")
    A("s_waitcnt lgkmcnt(0)")
    A("s_lshl_b32 s22, s80, 23")
    A("s_add_u32 s8, s4, s22\ns_addc_u32 s9, s5, 0\ns_and_b32 s9, s9, 0xffff")
    A(f"s_mov_b32 s10, {8<<20}\ns_mov_b32 s11, 0x20000")
    A("s_add_u32 s12, s6, s22\ns_addc_u32 s13, s7, 0\ns_and_b32 s13, s13, 0xffff")
    A("s_mov_b32 s14, s10\ns_mov_b32 s15, 0x20000")
    A("s_mov_b32 s72, s78\ns_and_b32 s73, s79, 0xffff\ns_mov_b32 s74, 256\ns_mov_b32 s75, 0x20000")
    A("s_and_b32 s89, s89, 0xffff\ns_mov_b32 s90, 0x1000000\ns_mov_b32 s91, 0x20000")
    A("v_mov_b32 v8, 0\nv_mov_b32 v9, 0\nv_mov_b32 v10, 0\nv_mov_b32 v11, 0")
    A("s_lshl_b32 s70, s2, 8\ns_add_u32 s70, s70, 0x100000")
    if mode=="sched":
        A(f"s_cmp_lg_u32 s3, {waves}\ns_cbranch_scc1 L_worker")
        A("s_mov_b64 exec, 1")
        A("s_mov_b32 s60, 0\ns_mov_b32 s61, 0\ns_mov_b32 s62, 0")
        A("L_sched:\ns_memrealtime s[64:65]\ns_waitcnt lgkmcnt(0)\nv_mov_b32 v14, 1\nbuffer_atomic_add v14, v12, s[72:75], 0 offen sc0\ns_waitcnt vmcnt(0)\ns_memrealtime s[66:67]\ns_waitcnt lgkmcnt(0)\ns_sub_u32 s66, s66, s64\ns_add_u32 s60, s60, s66\ns_max_u32 s61, s61, s66\ns_add_u32 s62, s62, 1")
        A("ds_write_b32 v13, v14\nv_xor_b32 v13, 4, v13\nv_readfirstlane_b32 s86, v14\ns_waitcnt lgkmcnt(0)\ns_barrier")
        A(f"s_add_u32 s86, s86, {S*8}\ns_cmp_lt_u32 s86, {NU}\ns_cbranch_scc1 L_sched")
        A("s_getreg_b32 s63, hwreg(HW_REG_XCC_ID)\ns_lshl_b32 s22, s2, 4\ns_add_u32 s22, s22, 0x200000\nv_mov_b32 v16, s60\nv_mov_b32 v17, s61\nv_mov_b32 v18, s62\nv_mov_b32 v19, s63\nv_mov_b32 v4, s22\nbuffer_store_dwordx4 v[16:19], v4, s[88:91], 0 offen\ns_endpgm")
        A("L_worker:")
    def piece_loads(t, base):
        p = pat if pat!="mix" else ("kpat" if t=='K' else "vpat")
        srd = "s[8:11]" if t=='K' else "s[12:15]"
        L=[]
        for u in range(T_kb):
            if p=="lin": L.append((srd,"v3",base+u*1024))
            elif p=="kpat": L.append((srd,"v6",base+(u//8)*8192+(u%8)*64))
            elif p=="vpat":
                blk=u//8; uu=u%8; kap=uu//2; hf=uu%2
                L.append((srd,"v7",base+blk*8192+kap*512+hf*256))
        return L
    body=[]
    for i in range(npiece):
        body+=piece_loads('K', i*waves*T)+piece_loads('V', i*waves*T)
    n=len(body)
    assert n%ring==0 and ring<=n//2, (n,ring)
    his=sorted(set(off//4096 for _,_,off in body))
    hmap={h:i for i,h in enumerate(his)}
    assert len(his)<=16
    R0=20
    def emit_load(idx, ld, soff_base):
        srd,v,off=ld
        r=R0+4*(idx%ring)
        A(f"buffer_load_dwordx4 v[{r}:{r+3}], {v}, {srd}, s{soff_base+hmap[off//4096]} offen offset:{off%4096} {flags}")
    def set_soff(base, reg, only=None):
        for h in his:
            if only is None or h in only: A(f"s_add_u32 s{base+hmap[h]}, {reg}, {h*4096}")
    def u2addr(su, sd):
        A(f"s_lshr_b32 s20, {su}, 3\ns_add_u32 s20, s20, s84\ns_and_b32 s20, s20, {NS-1}\ns_and_b32 s21, {su}, 7")
        if layout=="A": A(f"s_lshl_b32 s20, s20, 3\ns_add_u32 {sd}, s20, s21")
        else: A(f"s_mul_i32 s21, s21, {NS}\ns_add_u32 {sd}, s20, s21")
        A(f"s_lshl_b32 {sd}, {sd}, {lZ}")
        A(f"s_cmp_ge_u32 {su}, {NU}\ns_cselect_b32 {sd}, {8<<20}, {sd}")
    A("s_mov_b32 s85, s81")
    u2addr("s85","s16")
    A(f"s_mov_b32 s18, {S-1}\ns_mov_b32 s83, 0")
    set_soff(24,"s16")
    for i in range(ring): emit_load(i, body[i], 24)
    pre=set(off//4096 for _,_,off in body[:ring])
    A("L_loop:")
    if stamps: A("s_memrealtime s[68:69]")
    if mode=="vatom":
        A("s_or_b32 s20, s18, s3\ns_cmp_lg_u32 s20, 0\ns_cbranch_scc1 L_noatom")
        A("s_mov_b64 exec, 1\nv_mov_b32 v14, 1\nbuffer_atomic_add v14, v12, s[72:75], 0 offen sc0\ns_mov_b64 exec, -1")
        A("L_noatom:")
    elif mode=="satom":
        A("s_or_b32 s20, s18, s3\ns_cmp_lg_u32 s20, 0\ns_cbranch_scc1 L_noatom")
        A("s_mov_b32 s71, 1\ns_atomic_add s71, s[78:79], s82 glc")
        A("L_noatom:")
    for i in range(n):
        if i==n-ring:
            if stamps:
                A("s_waitcnt lgkmcnt(0)\ns_cmp_lg_u32 s3, 1\ns_cbranch_scc1 L_nost\ns_mov_b64 exec, 1\nv_mov_b32 v16, s68\nv_mov_b32 v17, s70\nbuffer_store_dword v16, v17, s[88:91], 0 offen\ns_mov_b64 exec, -1\ns_add_u32 s70, s70, 4\nL_nost:")
            A("s_cmp_eq_u32 s18, 0\ns_cbranch_scc1 L_dyn")
            if allbar: A("s_barrier")
            A(f"s_sub_u32 s18, s18, 1\ns_add_u32 s86, s85, 8\ns_branch L_have")
            A("L_dyn:")
            if mode!="sched":
                A("s_cmp_lg_u32 s3, 0\ns_cbranch_scc1 L_nowr")
                if mode=="satom": A("s_waitcnt lgkmcnt(0)\nv_mov_b32 v14, s71")
                A("s_mov_b64 exec, 1\nds_write_b32 v13, v14\ns_mov_b64 exec, -1\ns_waitcnt lgkmcnt(0)")
                A("L_nowr:")
            A("s_barrier\nds_read_b32 v15, v13\nv_xor_b32 v13, 4, v13\ns_waitcnt lgkmcnt(0)\nv_readfirstlane_b32 s86, v15")
            A(f"s_add_u32 s86, s86, {S*8}")
            A("L_have:")
            u2addr("s86","s17")
            set_soff(44,"s17",pre)
        A(f"s_waitcnt vmcnt({ring-1})")
        r=R0+4*(i%ring)
        A(f"v_xor_b32 v8, v8, v{r}\nv_xor_b32 v9, v9, v{r+1}\nv_xor_b32 v10, v10, v{r+2}\nv_xor_b32 v11, v11, v{r+3}")
        j=i+ring
        if j<n: emit_load(j, body[j], 24)
        else: emit_load(j, body[j-n], 44)
    A("s_mov_b32 s16, s17\ns_mov_b32 s85, s86\ns_add_u32 s83, s83, 1")
    set_soff(24,"s16")
    A(f"s_cmp_lt_u32 s85, {NU}\ns_cbranch_scc1 L_loop")
    A("s_waitcnt vmcnt(0)")
    A("s_memrealtime s[94:95]\ns_getreg_b32 s87, hwreg(HW_REG_XCC_ID)\ns_waitcnt lgkmcnt(0)")
    A(f"s_mul_i32 s22, s2, {waves}\ns_add_u32 s22, s22, s3\ns_lshl_b32 s22, s22, 5")
    A("v_mov_b32 v12, s92\nv_mov_b32 v13, s93\nv_mov_b32 v14, s94\nv_mov_b32 v15, s95\nv_mov_b32 v4, s22\nv_mov_b32 v16, s87\nv_mov_b32 v17, s83")
    A("s_mov_b64 exec, 1\nbuffer_store_dwordx4 v[12:15], v4, s[88:91], 0 offen\nbuffer_store_dwordx2 v[16:17], v4, s[88:91], 0 offen offset:16\ns_mov_b64 exec, -1")
    A("v_xor_b32 v8, v8, v9\nv_xor_b32 v8, v8, v10\nv_xor_b32 v8, v8, v11")
    A("v_cmp_eq_u32 vcc, 0x12345677, v8\ns_and_saveexec_b64 s[18:19], vcc\ns_cbranch_execz L_end")
    A("s_mov_b32 s78, 32768\ns_mov_b32 s79, 0x20000\ns_and_b32 s77, s77, 0xffff\nbuffer_store_dword v8, v3, s[76:79], 0 offen")
    A("L_end:\ns_endpgm")
    nv=R0+4*ring
    A(f""".section .rodata,"a"
.p2align 6
.amdhsa_kernel {KN}
  .amdhsa_next_free_vgpr {nv}
  .amdhsa_next_free_sgpr 96
  .amdhsa_accum_offset {(nv+3)//4*4}
  .amdhsa_group_segment_fixed_size 0
  .amdhsa_kernarg_size 48
  .amdhsa_user_sgpr_count 2
  .amdhsa_user_sgpr_kernarg_segment_ptr 1
  .amdhsa_system_sgpr_workgroup_id_x 1
.end_amdhsa_kernel""")
    open(name+".s","w").write("\n".join(o)+"\n")
    return build(name+".s")
if __name__=="__main__":
    specs=[]
    specs.append(gen("w2_static_Z64", S=16))
    for mode in ["sched"]:
        specs.append(gen(f"w2_{mode}_Z64_S12", S=12, mode=mode))
        specs.append(gen(f"w2_{mode}_Z64_S8", S=8, mode=mode))
        specs.append(gen(f"w2_{mode}_Z64_S8_A", S=8, mode=mode, layout="A"))
        specs.append(gen(f"w2_{mode}_Z64_S8_r4", S=8, mode=mode, ring=4))
        specs.append(gen(f"w2_{mode}_Z32_S24", Z_kb=32, S=24, mode=mode))
        specs.append(gen(f"w2_{mode}_Z128_S4", Z_kb=128, S=4, mode=mode))
    open("specs.txt","w").write("\n".join(specs)+"\n")
```

```python
import sys
from build import build
KN="standalone__gqa_softmax__decode_kernel"
def gen(name, waves=4, ring=8, T_kb=4, flags="nt", read=True, swz=False):
    nwg=256
    T=T_kb*1024
    chunk=1<<20
    slots=ring+4 if read else ring
    import math
    per=2*T_kb
    n=per*slots//math.gcd(per,slots)
    npiece=n//per
    niter=chunk//(T*waves)//npiece
    assert chunk//(T*waves)%npiece==0, (npiece,)
    ldsb=waves*slots*1024
    o=[]; A=o.append
    A(f"; @launch grid=({nwg},1,1) block=({waves*64},1,1) lds={ldsb}")
    A('.amdgcn_target "amdgcn-amd-amdhsa--gfx950"\n.text\n.globl %s\n.p2align 8\n.type %s,@function\n%s:'%(KN,KN,KN))
    A(f"s_cmp_ge_u32 s2, {nwg}\ns_cbranch_scc1 L_end")
    A("s_memrealtime s[92:93]\ns_load_dwordx4 s[4:7], s[0:1], 8\ns_load_dwordx4 s[76:79], s[0:1], 24\ns_load_dwordx2 s[88:89], s[0:1], 40")
    A("v_lshrrev_b32 v1, 6, v0\nv_and_b32 v2, 63, v0\ns_nop 0\nv_readfirstlane_b32 s3, v1")
    A(f"s_mul_i32 s23, s3, {T}")
    A("v_lshlrev_b32 v3, 4, v2")
    A(f"s_mul_i32 s60, s3, {slots*1024}")
    A("v_add_u32 v5, s60, v3")
    if swz:
        A("v_lshrrev_b32 v6, 5, v2\nv_lshlrev_b32 v6, 5, v6\nv_xor_b32 v3, v3, v6\nv_xor_b32 v3, 0x60, v3")
    A("v_add_u32 v3, s23, v3")
    A("s_waitcnt lgkmcnt(0)")
    A("s_lshl_b32 s22, s2, 20")
    A("s_add_u32 s8, s4, s22\ns_addc_u32 s9, s5, 0\ns_and_b32 s9, s9, 0xffff")
    A(f"s_mov_b32 s10, {chunk}\ns_mov_b32 s11, 0x20000")
    A("s_add_u32 s12, s6, s22\ns_addc_u32 s13, s7, 0\ns_and_b32 s13, s13, 0xffff")
    A("s_mov_b32 s14, s10\ns_mov_b32 s15, 0x20000")
    A("s_and_b32 s89, s89, 0xffff\ns_mov_b32 s90, 0x1000000\ns_mov_b32 s91, 0x20000")
    A("v_mov_b32 v8, 0\nv_mov_b32 v9, 0\nv_mov_b32 v10, 0\nv_mov_b32 v11, 0")
    body=[]
    for i in range(npiece):
        for t in "KV":
            for u in range(T_kb):
                body.append(("s[8:11]" if t=='K' else "s[12:15]", i*waves*T+u*1024))
    stride=npiece*waves*T
    def emit_load(idx, ld, nxt):
        srd,off=ld
        slot=idx%slots
        A(f"s_add_u32 m0, s60, {slot*1024}")
        A(f"s_add_u32 s20, {'s17' if nxt else 's16'}, {off}")
        A(f"buffer_load_dwordx4 v3, {srd}, s20 offen {flags} lds")
    A(f"s_mov_b32 s16, 0\ns_mov_b32 s17, {stride}\ns_mov_b32 s18, {niter}")
    for i in range(ring): emit_load(i, body[i], False)
    A("L_loop:")
    for i in range(n):
        A(f"s_waitcnt vmcnt({ring-1})")
        if read:
            r=16+4*(i%4)
            A(f"s_waitcnt lgkmcnt(3)") if False else None
            rp=16+4*((i-2)%4)
            A(f"ds_read_b128 v[{r}:{r+3}], v5 offset:{(i%slots)*1024}")
            A("s_waitcnt lgkmcnt(2)")
            A(f"v_xor_b32 v8, v8, v{rp}\nv_xor_b32 v9, v9, v{rp+1}\nv_xor_b32 v10, v10, v{rp+2}\nv_xor_b32 v11, v11, v{rp+3}")
        j=i+ring
        if j<n: emit_load(j, body[j], False)
        else: emit_load(j, body[j-n], True)
    A(f"s_mov_b32 s16, s17\ns_add_u32 s17, s17, {stride}")
    A("s_sub_u32 s18, s18, 1\ns_cmp_lg_u32 s18, 0\ns_cbranch_scc1 L_loop")
    A("s_waitcnt vmcnt(0) lgkmcnt(0)")
    A("s_memrealtime s[94:95]\ns_getreg_b32 s87, hwreg(HW_REG_XCC_ID)\ns_waitcnt lgkmcnt(0)")
    A(f"s_mul_i32 s22, s2, {waves}\ns_add_u32 s22, s22, s3\ns_lshl_b32 s22, s22, 5")
    A("v_mov_b32 v12, s92\nv_mov_b32 v13, s93\nv_mov_b32 v14, s94\nv_mov_b32 v15, s95\nv_mov_b32 v4, s22\nv_mov_b32 v16, s87\nv_mov_b32 v17, 0")
    A("s_mov_b64 exec, 1\nbuffer_store_dwordx4 v[12:15], v4, s[88:91], 0 offen\nbuffer_store_dwordx2 v[16:17], v4, s[88:91], 0 offen offset:16\ns_mov_b64 exec, -1")
    A("v_xor_b32 v8, v8, v9\nv_xor_b32 v8, v8, v10\nv_xor_b32 v8, v8, v11")
    A("v_cmp_eq_u32 vcc, 0x12345677, v8\ns_and_saveexec_b64 s[18:19], vcc\ns_cbranch_execz L_end")
    A("s_mov_b32 s78, 32768\ns_mov_b32 s79, 0x20000\ns_and_b32 s77, s77, 0xffff\nv_lshlrev_b32 v3, 2, v2\nbuffer_store_dword v8, v3, s[76:79], 0 offen")
    A("L_end:\ns_endpgm")
    nv=32
    A(f""".section .rodata,"a"
.p2align 6
.amdhsa_kernel {KN}
  .amdhsa_next_free_vgpr {nv}
  .amdhsa_next_free_sgpr 96
  .amdhsa_accum_offset {(nv+3)//4*4}
  .amdhsa_group_segment_fixed_size 0
  .amdhsa_kernarg_size 48
  .amdhsa_user_sgpr_count 2
  .amdhsa_user_sgpr_kernarg_segment_ptr 1
  .amdhsa_system_sgpr_workgroup_id_x 1
.end_amdhsa_kernel""")
    open(name+".s","w").write("\n".join(x for x in o if x)+"\n")
    return build(name+".s")
if __name__=="__main__":
    import gen_wg2
    specs=[]
    specs.append(gen_wg2.gen("w2_static_T4_r8", S=16, stamps=False))
    specs.append(gen_wg2.gen("w2_static_T8_r8", S=16, T_kb=8, stamps=False))
    specs.append(gen_wg2.gen("w2_static_T8_r8_mix", S=16, T_kb=8, pat="mix", stamps=False))
    specs.append(gen_wg2.gen("w2_static_T8_r16_mix", S=16, T_kb=8, ring=16, pat="mix", stamps=False))
    for T,ring in [(4,4),(4,12),(8,4),(8,12),(8,28),(4,28)]:
        specs.append(gen(f"ld_T{T}_r{ring}", T_kb=T, ring=ring))
    specs.append(gen(f"ld_T8_r12_swz", T_kb=8, ring=12, swz=True))
    specs.append(gen(f"ld_T8_r8_nord", T_kb=8, ring=8, read=False))
    for S in [28,29,30]:
        specs.append(gen_wg2.gen(f"w2_sched_Z32_S{S}", Z_kb=32, S=S, mode="sched", stamps=False))
    for S in [56,58,60]:
        specs.append(gen_wg2.gen(f"w2_sched_Z16_S{S}", Z_kb=16, T_kb=2, S=S, ring=4, mode="sched", stamps=False))
    open("specs.txt","w").write("\n".join(specs)+"\n")
```

```python
import struct, math, sys
KN = "standalone__gqa_softmax__decode_kernel"
def f32bits(x): return struct.unpack("<I", struct.pack("<f", x))[0]

HEADER = """; Kernarg layout for this problem (48 bytes, ptrs only, base s[0:1]):
;
"""

def gen(W=5, W2=10, NB=7, flags="nt"):
    NT = 32
    WAVE_LDS = 2*8192 + 4096
    EPI = 4*WAVE_LDS
    lds = 98304
    assert EPI + 8192 + 64 <= lds and 4 < W <= 6 and W <= W2 <= 14 and 1 <= NB <= 14
    o = []; A = o.append
    def C(t): A("    ; " + t)
    A(HEADER.rstrip())
    A(f"; @launch grid=(256,1,1) block=(256,1,1) lds={lds}")
    A(f'.amdgcn_target "amdgcn-amd-amdhsa--gfx950"\n.text\n.globl {KN}\n.p2align 8\n.type {KN},@function\n{KN}:')
    vLane, vG, vI, vOffV, vOffV2, vOffQ, vT, vU = 1, 2, 3, 5, 6, 7, 8, 9
    vM, vL = 10, 11
    X0, Y0 = 12, 14
    Q0 = 16; KF = 48; VR = 80; B0 = 144; ACC = 160; S0 = 192; P0 = 196; vKS = 200; vKA = 204; vSA = 208
    NV = 210
    sK, sV, sQ, sWS, sDBG, sOUT = 16, 20, 24, 28, 32, 36
    sC, sSelLo, sSelHi, sCnt = 42, 43, 44, 41
    sOffC, sOffC2, sOffN, sOffN2 = 46, 47, 48, 49
    sBufC, sBufN = 50, 51
    sOff0 = 52
    sMask = 58
    tstride = 32768
    nrec = 0x100000
    C("extra workgroups exit")
    A("s_cmp_ge_u32 s2, 256\ns_cbranch_scc1 L_end")
    A("s_load_dwordx8 s[4:11], s[0:1], 0\ns_load_dwordx4 s[12:15], s[0:1], 32")
    C("v1 = lane, s3 = wave, v5 = lane*16 + wave*8192, v200..203 = swizzled K source offsets (row pair n = 0..3)")
    A(f"v_and_b32 v{vLane}, 63, v0\nv_lshrrev_b32 v{vT}, 6, v0")
    A(f"v_lshlrev_b32 v{vOffV}, 4, v{vLane}\nv_lshl_add_u32 v{vOffV}, v{vT}, 13, v{vOffV}")
    A(f"v_readfirstlane_b32 s3, v{vT}")
    A(f"v_and_b32 v{vU}, 32, v{vLane}\nv_xor_b32 v{vKS}, v{vOffV}, v{vU}")
    for n in range(1, 4): A(f"v_xor_b32 v{vKS+n}, {2*n<<5}, v{vKS}")
    A("s_lshr_b32 s45, s2, 3")
    A(f"s_lshl_b32 s40, s2, 20\ns_mov_b32 s{sOffC}, 0")
    A(f"s_mov_b32 s{sK+2}, {nrec}\ns_mov_b32 s{sK+3}, 0x20000")
    A(f"s_mul_i32 s{sBufC}, s3, {WAVE_LDS}")
    A(f"s_mov_b32 m0, s{sBufC}")
    A("s_waitcnt lgkmcnt(0)")
    C("K descriptor: this workgroup's 1 MiB chunk (prefetches past it read nothing)")
    A(f"s_add_u32 s{sK}, s6, s40\ns_addc_u32 s{sK+1}, s7, 0\ns_and_b32 s{sK+1}, s{sK+1}, 0xffff")
    def k_m0(n, nxt):
        buf = sBufN if nxt else sBufC
        A(f"s_mov_b32 m0, s{buf}" if n < 4 else f"s_add_u32 m0, s{buf}, 0x1000")
    def k_load(n, nxt):
        so = (sOffN if n < 4 else sOffN2) if nxt else (sOffC if n < 4 else sOffC2)
        A(f"buffer_load_dwordx4 v{vKS+(n&3)}, s[{sK}:{sK+3}], s{so} offen offset:{(n&3)*1024} {flags} lds")
    def v_load(n, so, par=0):
        r = VR + 4*(n + 8*par)
        A(f"buffer_load_dwordx4 v[{r}:{r+3}], v{vOffV if n<4 else vOffV2}, s[{sV}:{sV+3}], s{so} offen offset:{(n&3)*1024} {flags}")
    NQA = 4
    for n in range(W):
        if n == NQA:
            C("score slot address (v208), Q fragment offsets (v7): lane (g, j) reads q head j&1, 16-B chunk 4u+g")
            A(f"v_lshrrev_b32 v{vG}, 4, v{vLane}\nv_and_b32 v{vI}, 15, v{vLane}")
            A(f"v_and_b32 v{vOffQ}, 1, v{vLane}")
            A(f"v_lshl_add_u32 v{vSA}, v{vG}, 1, v{vOffQ}\nv_lshlrev_b32 v{vSA}, 4, v{vSA}\nv_add_u32 v{vSA}, s{sBufC}, v{vSA}\nv_add_u32 v{vSA}, 0x4000, v{vSA}")
            A(f"v_lshlrev_b32 v{vOffQ}, 9, v{vOffQ}\nv_lshl_add_u32 v{vOffQ}, v{vG}, 4, v{vOffQ}")
            A(f"s_mov_b32 s{sQ+2}, 1024\ns_mov_b32 s{sQ+3}, 0x20000")
            A(f"s_lshl_b32 s60, s45, 10")
            A(f"s_add_u32 s{sQ}, s4, s60\ns_addc_u32 s{sQ+1}, s5, 0\ns_and_b32 s{sQ+1}, s{sQ+1}, 0xffff")
            A(f"s_mov_b32 s{sOff0}, s{sOffC}\ns_add_u32 s{sBufN}, s{sBufC}, 0x2000")
            A(f"s_add_u32 s{sOffC2}, s{sOffC}, 0x1000\ns_add_u32 s{sOffN}, s{sOffC}, {tstride}\ns_add_u32 s{sOffN2}, s{sOffC2}, {tstride}")
            for u in range(8):
                A(f"buffer_load_dwordx4 v[{Q0+4*u}:{Q0+4*u+3}], v{vOffQ}, s[{sQ}:{sQ+3}], 0 offen offset:{u*64}")
        if n >= NQA: k_m0(n % 8, n >= 8); A("s_nop 0")
        k_load(n % 8, n >= 8)
    C("MFMA row i <-> key 8*((i>>2)&1) + 2*(i&3) + (i>>3); v204..207 = LDS fragment read addresses (u&3)")
    A(f"v_add_u32 v{vOffV2}, 0x1000, v{vOffV}")
    A(f"v_bfe_u32 v4, v{vI}, 2, 1\nv_lshlrev_b32 v4, 3, v4")
    A(f"v_and_b32 v{vU}, 3, v{vI}\nv_lshl_add_u32 v4, v{vU}, 1, v4")
    A(f"v_lshrrev_b32 v{vU}, 3, v{vI}\nv_add_u32 v4, v4, v{vU}")
    A(f"v_and_b32 v{vU}, 7, v4\nv_lshlrev_b32 v{vU}, 5, v{vU}")
    A(f"v_lshlrev_b32 v{vKA}, 4, v{vG}\nv_xor_b32 v{vKA}, v{vKA}, v{vU}")
    A(f"v_lshl_add_u32 v{vKA}, v4, 9, v{vKA}")
    for u in range(1, 4): A(f"v_xor_b32 v{vKA+u}, {u*64}, v{vKA}")
    for u in range(4): A(f"v_add_u32 v{vKA+u}, s{sBufC}, v{vKA+u}")
    C("s42 = D^-0.5 * log2(e)")
    A(f"s_mov_b32 s{sC}, {f32bits(0.0625*math.log2(math.e)):#x}")
    A(f"s_mov_b32 s{sSelLo}, 0x05040100\ns_mov_b32 s{sSelHi}, 0x07060302")
    A(f"s_mov_b32 s{sMask}, 0x00030003\ns_mov_b32 s{sMask+1}, 0x00030003")
    A(f"s_mov_b32 s{sV+2}, {nrec}\ns_mov_b32 s{sV+3}, 0x20000")
    A(f"s_add_u32 s{sV}, s8, s40\ns_addc_u32 s{sV+1}, s9, 0\ns_and_b32 s{sV+1}, s{sV+1}, 0xffff")
    A(f"s_mov_b32 s{sWS}, s14\ns_and_b32 s{sWS+1}, s15, 0xffff\ns_mov_b32 s{sWS+2}, 0x100000\ns_mov_b32 s{sWS+3}, 0x20000")
    A(f"s_mov_b32 s{sDBG}, s12\ns_and_b32 s{sDBG+1}, s13, 0xffff\ns_mov_b32 s{sDBG+2}, 256\ns_mov_b32 s{sDBG+3}, 0x20000")
    A(f"s_mov_b32 s{sOUT}, s10\ns_and_b32 s{sOUT+1}, s11, 0xffff\ns_mov_b32 s{sOUT+2}, 32768\ns_mov_b32 s{sOUT+3}, 0x20000")
    for r in range(32): A(f"v_mov_b32 v{ACC+r}, 0")
    A(f"v_mov_b32 v{vM}, 0xff800000\nv_mov_b32 v{vL}, 0")
    def c_dsread():
        for u in range(8):
            A(f"ds_read_b128 v[{KF+4*u}:{KF+4*u+3}], v{vKA+(u&3)} offset:{(u>>2)*256}")
    def c_qk():
        for u in range(8):
            A(f"s_waitcnt lgkmcnt({7-u})")
            A(f"v_mfma_f32_16x16x32_bf16 v[{S0}:{S0+3}], v[{KF+4*u}:{KF+4*u+3}], v[{Q0+4*u}:{Q0+4*u+3}], {'0' if u==0 else f'v[{S0}:{S0+3}]'}")
    def c_swr():
        A(f"v_max3_f32 v{vM}, v{S0}, v{S0+1}, v{vM}\nv_max3_f32 v{vM}, v{S0+2}, v{S0+3}, v{vM}")
        A(f"s_mov_b64 exec, s[{sMask}:{sMask+1}]\nds_write_b128 v{vSA}, v[{S0}:{S0+3}]\ns_mov_b64 exec, -1")
        A(f"v_add_u32 v{vSA}, 128, v{vSA}")
        for u in range(4): A(f"v_add_u32 v{vKA+u}, s55, v{vKA+u}")
        A("s_sub_u32 s55, 0, s55")
    def k_advance():
        A(f"s_mov_b32 s{sOffC}, s{sOffN}\ns_mov_b32 s{sOffC2}, s{sOffN2}\ns_add_u32 s{sOffN}, s{sOffN}, {tstride}\ns_add_u32 s{sOffN2}, s{sOffN2}, {tstride}")
        A(f"s_mov_b32 s54, s{sBufC}\ns_mov_b32 s{sBufC}, s{sBufN}\ns_mov_b32 s{sBufN}, s54")
    def k_iter(compute, last, first=False):
        for s in range(8):
            j = s + W
            isK = (j < 8) or not last
            if isK: k_m0(j % 8, j >= 8)
            A(f"s_waitcnt vmcnt({W-1+(8 if (first and s < NQA) else 0)})")
            if isK: k_load(j % 8, j >= 8)
            else: v_load(j - 8, sOff0)
            if compute:
                if s == 0: c_dsread()
                if s == 1: c_qk()
                if s == 3: A("s_nop 3"); c_swr()
    A("s_mov_b32 s55, 0x2000")
    C("---- phase 1: K.  slot s: wait until load s of this tile landed, issue load s+W; compute lags one tile")
    k_iter(False, False, first=True)
    k_advance()
    A(f"s_mov_b32 s{sCnt}, {NT-2}")
    A(".p2align 6\nL_kloop:")
    k_iter(True, False)
    k_advance()
    A(f"s_sub_u32 s{sCnt}, s{sCnt}, 1\ns_cmp_lg_u32 s{sCnt}, 0\ns_cbranch_scc1 L_kloop")
    C("last K tile: the prefetch rolls over into V")
    k_iter(True, True)
    C("---- phase 2: V")
    sOffNN = sOffC2
    A(f"s_mov_b32 s{sOffC}, s{sOff0}\ns_add_u32 s{sOffN}, s{sOff0}, {tstride}\ns_add_u32 s{sOffNN}, s{sOffN}, {tstride}")
    def v_issue(j, par):
        v_load(j % 8, (sOffC, sOffN, sOffNN)[j // 8], (par + j // 8) & 1)
    def perms(pair, par):
        half = pair & 1
        La = VR + 8*pair + 32*par; Lb = La + 4
        for w in range(4):
            A(f"v_perm_b32 v{B0+2*(2*w)+half}, v{Lb+w}, v{La+w}, s{sSelLo}")
            A(f"v_perm_b32 v{B0+2*(2*w+1)+half}, v{Lb+w}, v{La+w}, s{sSelHi}")
    def pv(grp):
        Pop = X0 if grp == 0 else Y0
        for e in range(8):
            A(f"v_mfma_f32_4x4x4_16b_bf16 v[{ACC+4*e}:{ACC+4*e+3}], v[{Pop}:{Pop+1}], v[{B0+2*e}:{B0+2*e+1}], v[{ACC+4*e}:{ACC+4*e+3}]")
    def c_sread():
        A(f"ds_read_b128 v[{S0}:{S0+3}], v{vSA}\nv_add_u32 v{vSA}, 128, v{vSA}")
    def c_p():
        A("s_waitcnt lgkmcnt(0)")
        for r in range(4): A(f"v_fma_f32 v{P0+r}, v{S0+r}, s{sC}, -v{vM}")
        for r in range(4): A(f"v_exp_f32 v{P0+r}, v{P0+r}")
        A("s_nop 0")
        A(f"v_cvt_pk_bf16_f32 v{X0}, v{P0}, v{P0+1}\nv_cvt_pk_bf16_f32 v{X0+1}, v{P0+2}, v{P0+3}")
        A(f"v_mov_b32 v{Y0}, v{X0}\nv_mov_b32 v{Y0+1}, v{X0+1}")
        A(f"v_add_f32 v{vT}, v{P0}, v{P0+1}\nv_add_f32 v{vU}, v{P0+2}, v{P0+3}")
        A(f"v_permlane16_swap_b32 v{X0}, v{Y0}\nv_permlane16_swap_b32 v{X0+1}, v{Y0+1}")
        A(f"v_add_f32 v{vT}, v{vT}, v{vU}\nv_add_f32 v{vL}, v{vL}, v{vT}")
    def c_max():
        C("true max of all 512 scores of this wave (per q head), in log2 units")
        A(f"v_mov_b32 v{vU}, v{vM}\ns_nop 1\nv_permlane16_swap_b32 v{vM}, v{vU}\nv_max_f32 v{vM}, v{vM}, v{vU}")
        A(f"v_mov_b32 v{vU}, v{vM}\ns_nop 1\nv_permlane32_swap_b32 v{vM}, v{vU}\nv_max_f32 v{vM}, v{vM}, v{vU}")
        A(f"v_mul_f32 v{vM}, s{sC}, v{vM}")
        A(f"v_subrev_u32 v{vSA}, {NT*128}, v{vSA}")
    vE1, vE2, vE3, vE4, vA1, vA2 = vKS, vKS+1, vKS+2, vKS+3, vKA, vKA+1
    def early_epi():
        C("row sums across the lane groups, (m, l) to LDS, epilogue addresses")
        A(f"v_mov_b32 v{vU}, v{vL}\ns_nop 1\nv_permlane16_swap_b32 v{vL}, v{vU}\nv_add_f32 v{vL}, v{vL}, v{vU}")
        A(f"v_mov_b32 v{vU}, v{vL}\ns_nop 1\nv_permlane32_swap_b32 v{vL}, v{vU}\nv_add_f32 v{vL}, v{vL}, v{vU}")
        A(f"v_lshlrev_b32 v{vE3}, 5, v{vLane}\nv_add_u32 v{vE3}, {EPI}, v{vE3}")
        A(f"s_lshl_b32 s60, s3, 11\nv_add_u32 v{vE1}, s60, v{vE3}")
        A(f"s_lshl_b32 s60, s3, 3\nv_add_u32 v{vE2}, s60, v{vE3}")
        A(f"s_mov_b64 exec, 3\nds_write_b64 v{vE2}, v[{vM}:{vM+1}] offset:8192\ns_mov_b64 exec, -1")
        A(f"v_and_b32 v{vE4}, 32, v{vLane}\nv_add_u32 v{vE4}, {EPI}, v{vE4}")
        A(f"v_lshlrev_b32 v{vOffQ}, 4, v{vLane}")
        A("s_lshl_b32 s60, s45, 15\ns_and_b32 s61, s2, 7\ns_lshl_b32 s61, s61, 12\ns_add_u32 s61, s61, s60")
        A(f"s_lshl_b32 s65, s45, 3\nv_mov_b32 v{vA1}, 1\nv_mov_b32 v{vA2}, s65")
    def v_iter(trans, par, Wc, final=False):
        for s in range(8):
            j = s + Wc
            if final:
                A(f"s_waitcnt vmcnt({max(Wc, min(8, Wc + s)) - 1 - s})")
                if j < 8: v_issue(j, par)
            else:
                A(f"s_waitcnt vmcnt({Wc-1})")
                v_issue(j, par)
            if trans:
                if s == 0: c_dsread()
                if s == 1: c_qk()
                if s == 2: A("s_nop 5"); c_swr(); c_max(); c_sread()
            else:
                if s == 0: c_sread()
            if s & 1: perms(s >> 1, par)
            if s == (3 if trans else 2): c_p()
            if s == 3: A("s_nop 1"); pv(0)
            if s == 7: A("s_nop 1"); pv(1)
            if final and s == 4: early_epi()
        if not final:
            A(f"s_mov_b32 s{sOffC}, s{sOffN}\ns_mov_b32 s{sOffN}, s{sOffNN}\ns_add_u32 s{sOffNN}, s{sOffNN}, {tstride}")
    C("V tile 0 (also finishes the last K tile and the max)")
    v_iter(True, 0, W)
    A(f"s_mov_b32 s{sCnt}, {15-NB}")
    A(".p2align 6\nL_vloop:")
    v_iter(False, 1, W); v_iter(False, 0, W)
    A(f"s_sub_u32 s{sCnt}, s{sCnt}, 1\ns_cmp_lg_u32 s{sCnt}, 0\ns_cbranch_scc1 L_vloop")
    C("deeper prefetch for the remaining tiles")
    for j in range(W, W2): v_issue(j, 1)
    A(f"s_mov_b32 s{sCnt}, {NB}")
    A(".p2align 6\nL_vloop2:")
    v_iter(False, 1, W2); v_iter(False, 0, W2)
    A(f"s_sub_u32 s{sCnt}, s{sCnt}, 1\ns_cmp_lg_u32 s{sCnt}, 0\ns_cbranch_scc1 L_vloop2")
    C("last V tile")
    v_iter(False, 1, W2, final=True)
    A("s_nop 4")
    C("---- epilogue: fold the two half-waves (lane l -> q = l>>5, d = (l&31)*8 + e), exchange through LDS")
    Z = KF
    for e in range(8): A(f"v_permlane32_swap_b32 v{ACC+4*e}, v{ACC+4*e+1}")
    for e in range(8): A(f"v_add_f32 v{Z+e}, v{ACC+4*e}, v{ACC+4*e+1}")
    A(f"ds_write_b128 v{vE1}, v[{Z}:{Z+3}]\nds_write_b128 v{vE1}, v[{Z+4}:{Z+7}] offset:16")
    A("s_waitcnt lgkmcnt(0)\ns_barrier")
    A("s_mov_b32 s64, 0\ns_cmp_lg_u32 s3, 0\ns_cbranch_scc1 L_end")
    C("wave 0: merge the four waves")
    ML = Q0; OO = KF; REC = ACC; Wt = Q0 + 8
    A(f"ds_read_b128 v[{ML}:{ML+3}], v{vE4} offset:8192\nds_read_b128 v[{ML+4}:{ML+7}], v{vE4} offset:8208")
    for w in range(4):
        A(f"ds_read_b128 v[{OO+8*w}:{OO+8*w+3}], v{vE3} offset:{2048*w}\nds_read_b128 v[{OO+8*w+4}:{OO+8*w+7}], v{vE3} offset:{2048*w+16}")
    A("s_waitcnt lgkmcnt(8)")
    A(f"v_max3_f32 v{REC+8}, v{ML}, v{ML+2}, v{ML+4}\nv_max_f32 v{REC+8}, v{REC+8}, v{ML+6}")
    for w in range(4): A(f"v_sub_f32 v{Wt+w}, v{ML+2*w}, v{REC+8}")
    for w in range(4): A(f"v_exp_f32 v{Wt+w}, v{Wt+w}")
    A("s_nop 0")
    A(f"v_mul_f32 v{REC+9}, v{Wt}, v{ML+1}")
    for w in range(1, 4): A(f"v_fmac_f32 v{REC+9}, v{Wt+w}, v{ML+2*w+1}")
    C("record in d_ws: pair*32768 + j*4096 + {O lo, O hi, (m,l)}*1024 + lane*16, write-through")
    A(f"buffer_store_dwordx2 v[{REC+8}:{REC+9}], v{vOffQ}, s[{sWS}:{sWS+3}], s61 offen offset:2048 sc1")
    for w in range(4):
        A(f"s_waitcnt lgkmcnt({6-2*w})")
        for e in range(8):
            A(f"v_mul_f32 v{REC+e}, v{Wt}, v{OO+e}" if w == 0 else f"v_fmac_f32 v{REC+e}, v{Wt+w}, v{OO+8*w+e}")
    A(f"buffer_store_dwordx4 v[{REC}:{REC+3}], v{vOffQ}, s[{sWS}:{sWS+3}], s61 offen sc1")
    A(f"buffer_store_dwordx4 v[{REC+4}:{REC+7}], v{vOffQ}, s[{sWS}:{sWS+3}], s61 offen offset:1024 sc1")
    A("s_waitcnt vmcnt(0)")
    C("arrival counter of the pair (d_debug starts at zero); the last arriver merges")
    A(f"s_mov_b64 exec, 1\nbuffer_atomic_add v{vA1}, v{vA2}, s[{sDBG}:{sDBG+3}], 0 offen sc0\ns_mov_b64 exec, -1")
    A("s_waitcnt vmcnt(0)")
    A(f"v_readfirstlane_b32 s64, v{vA1}")
    A("s_cmp_lg_u32 s64, 7\ns_cbranch_scc1 L_end")
    PO = KF; PM = Q0
    for jj in range(8):
        A(f"s_add_u32 s62, s60, {jj*4096}")
        A(f"buffer_load_dwordx2 v[{PM+2*jj}:{PM+2*jj+1}], v{vOffQ}, s[{sWS}:{sWS+3}], s62 offen offset:2048 sc1")
    for jj in range(8):
        A(f"s_add_u32 s62, s60, {jj*4096}")
        A(f"buffer_load_dwordx4 v[{PO+8*jj}:{PO+8*jj+3}], v{vOffQ}, s[{sWS}:{sWS+3}], s62 offen sc1")
        A(f"buffer_load_dwordx4 v[{PO+8*jj+4}:{PO+8*jj+7}], v{vOffQ}, s[{sWS}:{sWS+3}], s62 offen offset:1024 sc1")
    A(f"s_lshl_b32 s60, s45, 10")
    A("s_waitcnt vmcnt(16)")
    A(f"v_max3_f32 v{vU}, v{PM}, v{PM+2}, v{PM+4}\nv_max3_f32 v{vU}, v{vU}, v{PM+6}, v{PM+8}\nv_max3_f32 v{vU}, v{vU}, v{PM+10}, v{PM+12}\nv_max_f32 v{vU}, v{vU}, v{PM+14}")
    W2r = Q0 + 16
    for jj in range(8): A(f"v_sub_f32 v{W2r+jj}, v{PM+2*jj}, v{vU}")
    for jj in range(8): A(f"v_exp_f32 v{W2r+jj}, v{W2r+jj}")
    A("s_nop 0")
    A(f"v_mul_f32 v{REC+9}, v{W2r}, v{PM+1}")
    for jj in range(1, 8): A(f"v_fmac_f32 v{REC+9}, v{W2r+jj}, v{PM+2*jj+1}")
    A(f"v_rcp_f32 v{REC+9}, v{REC+9}\ns_nop 0")
    for jj in range(8): A(f"v_mul_f32 v{W2r+jj}, v{W2r+jj}, v{REC+9}")
    for jj in range(8):
        A(f"s_waitcnt vmcnt({14-2*jj})")
        for e in range(8):
            A(f"v_mul_f32 v{REC+e}, v{W2r}, v{PO+e}" if jj == 0 else f"v_fmac_f32 v{REC+e}, v{W2r+jj}, v{PO+8*jj+e}")
    for e in range(4): A(f"v_cvt_pk_bf16_f32 v{REC+e}, v{REC+2*e}, v{REC+2*e+1}")
    A(f"buffer_store_dwordx4 v[{REC}:{REC+3}], v{vOffQ}, s[{sOUT}:{sOUT+3}], s60 offen")
    A("L_end:\ns_endpgm")
    A(f""".section .rodata,"a"
.p2align 6
.amdhsa_kernel {KN}
  .amdhsa_next_free_vgpr {NV}
  .amdhsa_next_free_sgpr 100
  .amdhsa_accum_offset {(NV+3)//4*4}
  .amdhsa_group_segment_fixed_size 0
  .amdhsa_kernarg_size 48
  .amdhsa_user_sgpr_count 2
  .amdhsa_user_sgpr_kernarg_segment_ptr 1
  .amdhsa_system_sgpr_workgroup_id_x 1
  .amdhsa_float_denorm_mode_32 3
.end_amdhsa_kernel""")
    return "\n".join(o) + "\n"

if __name__ == "__main__":
    out = sys.argv[1] if len(sys.argv) > 1 else "standalone__gqa_softmax__decode.s"
    open(out, "w").write(gen())
```
